```python
import torch

def _softmax(x, axis=-1):
    return torch.softmax(x, dim=axis)
def _gelu(x):
    return torch.nn.functional.gelu(x, approximate="tanh")
def _silu(x):
    return torch.nn.functional.silu(x)
def _sigmoid(x):
    return torch.sigmoid(x)
def _layernorm(x, axis=-1, eps=1e-5):
    m = x.mean(dim=axis, keepdim=True)
    v = x.var(dim=axis, keepdim=True, unbiased=False)
    return (x - m) / torch.sqrt(v + eps)
def _scatter_add(tgt, idx, src, axis=0):
    return tgt.clone().index_add_(axis, idx, src)
def _segment_sum(src, seg, n):
    out = torch.zeros((n,) + src.shape[1:], dtype=src.dtype)
    return out.index_add_(0, seg, src)
def _pad(x, pw):
    flat = tuple(v for pair in reversed(pw) for v in pair)
    return torch.nn.functional.pad(x, flat)

kernel_name = 'standalone__low_rank_proj_linformer__sampling'

def setup_inputs():

    _w = (lambda a: (lambda t: t.to(torch.bfloat16) if t.is_floating_point() else t)(torch.as_tensor(a)))
    B, H, Sq, Skv, Dh, R = 8, 32, 8, 2048, 192, 16
    return {
        "q": _w((lambda *s: torch.randn(*s, dtype=torch.bfloat16) * 0.8)(B, H, Sq, Dh)),
        "k": _w((lambda *s: torch.randn(*s, dtype=torch.bfloat16) * 0.8)(B, H, Skv, Dh)),
        "v": _w((lambda *s: torch.randn(*s, dtype=torch.bfloat16) * 0.05)(B, H, Skv, Dh)),
        "e_proj": _w((lambda *s: torch.randn(*s, dtype=torch.bfloat16) * 0.8)(R, Skv) * (Skv ** -0.5)),
        "f_proj": _w((lambda *s: torch.randn(*s, dtype=torch.bfloat16) * 0.05)(R, Skv) * (Skv ** -0.5)),
    }

def reference(q, k, v, e_proj, f_proj):
    B, H, Sq, Dh = q.shape
    kp = torch.einsum("rn,bhnd->bhrd", e_proj, k)
    vp = torch.einsum("rn,bhnd->bhrd", f_proj, v)
    scores = torch.einsum("bhqd,bhrd->bhqr", q, kp) * (Dh ** -0.5)
    p = _softmax(scores, axis=-1)
    o = torch.einsum("bhqr,bhrd->bhqd", p, vp)
    return o
```

```python
import struct, sys

NAME = "standalone__low_rank_proj_linformer__sampling_kernel"
REG = 786432
GRP = 3136
EOFF = 4 * GRP
SLOT = EOFF + 1024

HEADER = """; Kernarg layout for this problem (64 bytes, ptrs only, base s[0:1]):
"""

def f2u(x):
    return struct.unpack("<I", struct.pack("<f", x))[0]

def gen(N=23, LAG=3, pol="nt", epol="", opol="", qpol="nt", stamp=False, lds_min=90000, prio=3,
        openend=8, Nopen=38, epos=0, fine=False, nostore=False, rot=9, doc="", touch=0, openstart=0, nstart=0, Nstart=16, page=True):
    L = []
    A = L.append
    NS = LAG + 2
    SC = NS * SLOT
    lds = max(SC + 3072, lds_min)
    assert lds <= 163840
    allN = [N] + ([Nopen] if openend else [])
    assert max(allN) + 1 <= 13 * LAG
    p = (" " + pol) if pol else ""
    ep = (" " + epol) if epol else ""
    op = (" " + opol) if opol else ""
    qp = (" " + qpol) if qpol else ""
    if stamp:
        A("; bench: stamp=1024" + (" fine=6" if fine else ""))
    A(HEADER + doc + f"; @launch grid=(256,1,1) block=(256,1,1) lds={lds}")
    A('.amdgcn_target "amdgcn-amd-amdhsa--gfx950"')
    A(".text")
    A(f".globl {NAME}")
    if page:
        A(".p2align 12                                  ; keep the whole kernel inside one 4-KiB page")
    A(".p2align 8")
    A(f".type {NAME},@function")
    A(f"{NAME}:")
    A("  s_load_dwordx8 s[4:11], s[0:1], 0          ; q k v e")
    if stamp:
        A("  s_load_dwordx8 s[64:71], s[0:1], 32")
        A("  s_memrealtime s[48:49]")
    else:
        A("  s_load_dwordx4 s[64:67], s[0:1], 32        ; f out")
    A("  v_lshrrev_b32 v1, 6, v0")
    A("  s_cmp_ge_u32 s2, 256")
    A("  s_cbranch_scc1 L_end")
    A("  v_readfirstlane_b32 s3, v1")
    A("  v_and_b32 v0, 63, v0                       ; lane L")
    A("  v_lshrrev_b32 v11, 4, v0                   ; q = L>>4")
    A("  v_lshlrev_b32 v7, 4, v0                    ; L*16")
    A("  s_mov_b32 s34, 0")
    A("  s_cmp_lg_u32 s3, 0")
    A("  s_cbranch_scc1 L_consumer")
    if prio:
        A(f"  s_setprio {prio}")
    A(f"  s_mul_i32 s40, s2, {REG}")
    A("  s_mov_b32 s19, 0x20000")
    A(f"  s_mov_b32 s18, {REG}")
    A("  s_mov_b32 s23, 0x20000")
    A("  s_mov_b32 s22, 65536")
    A("  v_and_b32 v10, 15, v0")
    A("  v_lshlrev_b32 v10, 12, v10")
    A("  v_lshl_add_u32 v8, v11, 4, v10")
    A(f"  s_lshl_b32 s33, s2, {rot}")
    A("  s_sub_u32 s33, 0, s33")
    A("  s_and_b32 s33, s33, 4095")
    A("  s_mul_i32 s32, s33, 192")
    A("  s_mov_b32 s37, 0")
    A("  s_waitcnt lgkmcnt(0)")
    A("  s_add_u32 s16, s6, s40")
    A("  s_addc_u32 s17, s7, 0")
    A("  s_mov_b32 s20, s10")
    A("  s_mov_b32 s21, s11")
    def block(n):
        def lde():
            A(f"  s_add_u32 m0, s34, {EOFF}")
            A(f"  s_waitcnt vmcnt({n})")
            A(f"  buffer_load_dwordx4 v8, s[20:23], s33 offen{ep} lds")
        for g in range(4):
            if epos == g:
                lde()
            if g == 0:
                A("  s_mov_b32 m0, s34")
            else:
                A(f"  s_add_u32 m0, s34, {g*GRP}")
                A(f"  s_add_u32 s35, s32, {g*3072}")
            so = "s32" if g == 0 else "s35"
            for i in range(3):
                off = f" offset:{1024*i}" if i else ""
                A(f"  s_waitcnt vmcnt({n})")
                A(f"  buffer_load_dwordx4 v7, s[16:19], {so} offen{off}{p} lds")
        if epos == 4:
            lde()
    A("L_load:")
    if nstart:
        A(f"  s_cmp_lt_u32 s37, {nstart}")
        A("  s_cbranch_scc1 L_start")
    if openstart:
        A(f"  s_sub_u32 s35, s37, {openstart}")
        A(f"  s_cmp_ge_u32 s35, {128 - openend - openstart}")
        A("  s_cbranch_scc1 L_open")
    elif openend:
        A(f"  s_cmp_ge_u32 s37, {128 - openend}")
        A("  s_cbranch_scc1 L_open")
    block(N)
    A("L_issued:")
    A("  s_add_u32 s33, s33, 64")
    A("  s_and_b32 s33, s33, 4095")
    A("  s_mul_i32 s32, s33, 192")
    A(f"  s_add_u32 s34, s34, {SLOT}")
    A(f"  s_cmp_eq_u32 s34, {NS*SLOT}")
    A("  s_cselect_b32 s34, 0, s34")
    A(f"  s_cmp_lt_u32 s37, {LAG}")
    A("  s_cbranch_scc1 L_nobar")
    A(f"  s_barrier")
    A("L_nobar:")
    A("  s_add_u32 s37, s37, 1")
    A("  s_and_b32 s35, s37, 63")
    A("  s_cbranch_scc1 L_load")
    A("  s_add_u32 s16, s8, s40")
    A("  s_addc_u32 s17, s9, 0")
    A("  s_mov_b32 s20, s64")
    A("  s_mov_b32 s21, s65")
    A("  s_cmp_eq_u32 s37, 64")
    A("  s_cbranch_scc1 L_load")
    if fine:
        A("  s_memrealtime s[72:73]")
    for k in range(LAG - 1, -1, -1):
        A(f"  s_waitcnt vmcnt({13*k})")
        if fine and k == 0:
            A("  s_memrealtime s[74:75]")
        A("  s_barrier")
    if stamp:
        A("  s_branch L_stamp")
    else:
        A("  s_endpgm")
    if nstart:
        A("L_start:")
        block(Nstart)
        A("  s_branch L_issued")
    if openend:
        A("L_open:")
        block(Nopen)
        A("  s_branch L_issued")
    A("L_consumer:")
    A("  v_add_u32 v1, -1, v1")
    A("  s_mul_i32 s41, s2, 3072")
    A("  s_mov_b32 s26, 3072")
    A("  s_mov_b32 s27, 0x20000")
    A("  s_mov_b32 s30, 3072")
    A("  s_mov_b32 s31, 0x20000")
    A("  v_and_b32 v10, 7, v0")
    A("  v_mul_u32_u24 v10, 0x180, v10")
    A("  v_lshl_add_u32 v10, v1, 7, v10")
    A("  v_lshl_add_u32 v2, v11, 4, v10")
    A("  v_and_b32 v10, 8, v0")
    A("  v_lshl_add_u32 v3, v10, 3, v2")
    A("  v_bfe_u32 v13, v0, 2, 2                    ; r")
    A(f"  v_mul_u32_u24 v10, {GRP}, v11")
    A("  v_mul_u32_u24 v14, 0x180, v13")
    A("  v_add_u32 v10, v10, v14")
    A("  v_lshl_add_u32 v10, v1, 7, v10")
    A("  v_and_b32 v14, 3, v0")
    A("  v_lshl_add_u32 v6, v14, 4, v10")
    A(f"  v_add_u32 v5, {SC}, v7")
    A("  v_lshl_add_u32 v4, v1, 10, v5")
    for i in range(16):
        A(f"  v_mov_b32 v{32+i}, 0")
    A("  v_mov_b32 v8, v6")
    A("  v_mov_b32 v9, v7")
    A("  s_mov_b32 s37, 64")
    A(f"  s_mov_b32 s42, {f2u(192 ** -0.5):#x}              ; Dh^-0.5")
    A(f"  s_mov_b32 s43, {f2u(1.4426950408889634):#x}              ; log2(e)")
    A("  s_mov_b32 s44, 0xffff0000")
    A("  s_mov_b32 s46, 0xff00ff00")
    A("  s_mov_b32 s47, 0xff00ff00")
    A("  s_waitcnt lgkmcnt(0)")
    A("  s_add_u32 s24, s4, s41")
    A("  s_addc_u32 s25, s5, 0")
    A("  s_add_u32 s28, s66, s41")
    A("  s_addc_u32 s29, s67, 0")
    A(f"  buffer_load_dwordx4 v[48:51], v2, s[24:27], 0 offen{qp}")
    A(f"  buffer_load_dwordx4 v[52:55], v2, s[24:27], 0 offen offset:64{qp}")

    if touch:
        A("  s_cmp_lg_u32 s3, 1")
        A("  s_cbranch_scc1 L_notouch")
        A(f"  s_mul_i32 s40, s2, {REG}")
        A(f"  s_mov_b32 s18, {REG}")
        A("  s_mov_b32 s19, 0x20000")
        A(f"  v_mul_u32_u24 v10, {(REG - 64) // 3}, v0")
        A("  v_and_b32 v10, -64, v10")
        if touch & 1:
            A("  s_add_u32 s16, s6, s40")
            A("  s_addc_u32 s17, s7, 0")
            A("  buffer_load_dword v62, v10, s[16:19], 0 offen nt")
        if touch & 2:
            A("  s_add_u32 s16, s8, s40")
            A("  s_addc_u32 s17, s9, 0")
            A("  buffer_load_dword v62, v10, s[16:19], 0 offen nt")
        if touch & 4:
            A("  s_mov_b32 s16, s64")
            A("  s_mov_b32 s17, s65")
            A("  s_mov_b32 s18, 65536")
            A("  buffer_load_dword v62, v10, s[16:19], 0 offen")
        if touch & 8:
            A("  buffer_load_dword v62, v10, s[28:31], 0 offen nt")
        A("L_notouch:")

    def body(kind, last=False):
        A("  s_barrier")
        A(f"  ds_read_b128 v[12:15], v9 offset:{EOFF}")
        for t in range(4):
            for h in range(2):
                r = 16 + 4*t + 2*h
                off = h*1536 + (t >> 1)*64 + (t & 1)*8
                A(f"  ds_read_b64_tr_b16 v[{r}:{r+1}], v8" + (f" offset:{off}" if off else ""))
        if not last:
            A(f"  s_add_u32 s34, s34, {SLOT}")
            A(f"  s_cmp_eq_u32 s34, {NS*SLOT}")
            A("  s_cselect_b32 s34, 0, s34")
            A("  s_sub_u32 s37, s37, 1")
            A("  s_cmp_lg_u32 s37, 0")
        for t in range(4):
            A(f"  s_waitcnt lgkmcnt({6-2*t})")
            if kind == "K":
                A(f"  v_mfma_f32_16x16x32_bf16 v[{32+4*t}:{35+4*t}], v[{16+4*t}:{19+4*t}], v[12:15], v[{32+4*t}:{35+4*t}]")
            else:
                A(f"  v_mfma_f32_16x16x32_bf16 v[{32+4*t}:{35+4*t}], v[12:15], v[{16+4*t}:{19+4*t}], v[{32+4*t}:{35+4*t}]")
        if not last:
            A("  v_add_u32 v8, s34, v6")
            A("  v_add_u32 v9, s34, v7")

    A("L_k:")
    body("K")
    A("  s_cbranch_scc1 L_k")
    A("  s_nop 1")
    for i in range(8):
        A(f"  v_cvt_pk_bf16_f32 v{16+i}, v{32+2*i}, v{33+2*i}")
    A("  s_waitcnt vmcnt(0)                         ; q")
    A("  s_mov_b32 s37, 63")
    A("  v_mfma_f32_16x16x32_bf16 v[56:59], v[16:19], v[48:51], 0")
    A("  v_mfma_f32_16x16x32_bf16 v[56:59], v[20:23], v[52:55], v[56:59]")
    for i in range(16):
        A(f"  v_mov_b32 v{32+i}, 0")
    A("  ds_write_b128 v4, v[56:59]")
    A("  s_waitcnt lgkmcnt(0)")
    body("V")
    for w in range(3):
        A(f"  ds_read_b128 v[{48+4*w}:{51+4*w}], v5" + (f" offset:{1024*w}" if w else ""))
    A("  s_waitcnt lgkmcnt(1)")
    for v in range(4):
        A(f"  v_add_f32 v{48+v}, v{48+v}, v{52+v}")
    A("  s_waitcnt lgkmcnt(0)")
    for v in range(4):
        A(f"  v_add_f32 v{48+v}, v{48+v}, v{56+v}")
    def round_bf16():
        A("  v_cvt_pk_bf16_f32 v52, v48, v49")
        A("  v_cvt_pk_bf16_f32 v53, v50, v51")
        A("  v_lshlrev_b32 v48, 16, v52")
        A("  v_and_b32 v49, s44, v52")
        A("  v_lshlrev_b32 v50, 16, v53")
        A("  v_and_b32 v51, s44, v53")
    round_bf16()
    for v in range(4):
        A(f"  v_mul_f32 v{48+v}, s42, v{48+v}")
    round_bf16()
    def xlane(op_):
        A("  v_mov_b32 v55, v54")
        A("  s_nop 1")
        A("  v_permlane16_swap_b32 v54, v55")
        A(f"  {op_} v54, v54, v55")
        A("  v_mov_b32 v55, v54")
        A("  s_nop 1")
        A("  v_permlane32_swap_b32 v54, v55")
        A(f"  {op_} v54, v54, v55")
    A("  v_max3_f32 v54, v48, v49, v50")
    A("  v_max_f32 v54, v54, v51")
    xlane("v_max_f32")
    for v in range(4):
        A(f"  v_sub_f32 v{48+v}, v{48+v}, v54")
    for v in range(4):
        A(f"  v_mul_f32 v{48+v}, s43, v{48+v}")
    for v in range(4):
        A(f"  v_exp_f32 v{48+v}, v{48+v}")
    A("  s_nop 0")
    A("  v_add_f32 v54, v48, v49")
    A("  v_add_f32 v53, v50, v51")
    A("  v_add_f32 v54, v54, v53")
    xlane("v_add_f32")
    A("  v_rcp_f32 v54, v54")
    A("  s_nop 0")
    for v in range(4):
        A(f"  v_mul_f32 v{48+v}, v{48+v}, v54")
    A("  v_cvt_pk_bf16_f32 v60, v48, v49            ; p, bf16")
    A("  v_cvt_pk_bf16_f32 v61, v50, v51")
    A("L_v:")
    body("V")
    A("  s_cbranch_scc1 L_v")
    body("V", last=True)
    if fine:
        A("  s_memrealtime s[72:73]")
    A("  s_nop 1")
    for t in range(4):
        A(f"  v_cvt_pk_bf16_f32 v{48+2*t}, v{32+4*t}, v{33+4*t}")
        A(f"  v_cvt_pk_bf16_f32 v{49+2*t}, v{34+4*t}, v{35+4*t}")
        A("  s_nop 1")
        A(f"  v_mfma_f32_16x16x16_bf16 v[{16+4*t}:{19+4*t}], v[{48+2*t}:{49+2*t}], v[60:61], 0")
    for i in range(4):
        A(f"  v_cvt_pk_bf16_f32 v{12+i}, v{16+2*i}, v{17+2*i}")
    A("  s_mov_b64 exec, s[46:47]")
    A("  s_nop 0")
    A("  v_cvt_pk_bf16_f32 v12, v24, v25")
    A("  v_cvt_pk_bf16_f32 v13, v26, v27")
    A("  v_cvt_pk_bf16_f32 v14, v28, v29")
    A("  v_cvt_pk_bf16_f32 v15, v30, v31")
    A("  s_mov_b64 exec, -1")
    if not nostore:
        A(f"  buffer_store_dwordx4 v[12:15], v3, s[28:31], 0 offen{op}")
    if fine:
        A("  s_memrealtime s[74:75]")
    if stamp:
        A("L_stamp:")
        A("  s_waitcnt vmcnt(0)")
        A("  s_memrealtime s[50:51]")
        A("  s_getreg_b32 s44, hwreg(HW_REG_XCC_ID)")
        A("  s_getreg_b32 s45, hwreg(HW_REG_HW_ID)")
        A("  s_waitcnt lgkmcnt(0)")
        A("  s_lshl_b32 s26, s2, 2")
        A("  s_add_u32 s26, s26, s3")
        A("  s_lshl_b32 s26, s26, 5")
        A("  s_mov_b32 s28, s70")
        A("  s_mov_b32 s29, s71")
        A("  s_mov_b32 s30, 0x1000000")
        A("  s_mov_b32 s31, 0x20000")
        A("  v_mov_b32 v4, s48")
        A("  v_mov_b32 v5, s49")
        A("  v_mov_b32 v6, s50")
        A("  v_mov_b32 v7, s51")
        A("  v_mov_b32 v8, s44")
        A("  v_mov_b32 v9, s45")
        if fine:
            A("  v_mov_b32 v10, s72")
            A("  v_mov_b32 v11, s74")
        A("  v_mov_b32 v3, 0")
        A("  s_mov_b64 exec, 1")
        A("  buffer_store_dwordx4 v[4:7], v3, s[28:31], s26 offen")
        A("  buffer_store_dwordx4 v[8:11], v3, s[28:31], s26 offen offset:16")
    A("L_end:")
    A("  s_endpgm")
    A('.section .rodata,"a"')
    A(".p2align 6")
    A(f".amdhsa_kernel {NAME}")
    A("  .amdhsa_next_free_vgpr 64")
    A("  .amdhsa_next_free_sgpr 80")
    A("  .amdhsa_accum_offset 64")
    A("  .amdhsa_group_segment_fixed_size 0")
    A("  .amdhsa_kernarg_size 64")
    A("  .amdhsa_user_sgpr_count 2")
    A("  .amdhsa_user_sgpr_kernarg_segment_ptr 1")
    A("  .amdhsa_system_sgpr_workgroup_id_x 1")
    A("  .amdhsa_float_denorm_mode_32 3")
    A(".end_amdhsa_kernel")
    return "\n".join(L) + "\n"

if __name__ == "__main__":
    print(gen(), end="")
```

```python
import gen4, os
os.makedirs("k23", exist_ok=True)
def mk(n, **kw): open(f"k23/{n}.s", "w").write(gen4.gen(**kw))
for pg in (0, 1):
    mk(f"N22_e20_page{pg}", N=22, openend=20, page=pg)
    mk(f"N22_e8_page{pg}", N=22, openend=8, page=pg)
    mk(f"N21_e20_page{pg}", N=21, openend=20, page=pg)
```
